```python
import torch

def _softmax(x, axis=-1):
    return torch.softmax(x, dim=axis)

def _gelu(x):
    return torch.nn.functional.gelu(x, approximate='tanh')

def _silu(x):
    return torch.nn.functional.silu(x)

def _sigmoid(x):
    return torch.sigmoid(x)

def _layernorm(x, axis=-1, eps=1e-05):
    m = x.mean(dim=axis, keepdim=True)
    v = x.var(dim=axis, keepdim=True, unbiased=False)
    return (x - m) / torch.sqrt(v + eps)

def _scatter_add(tgt, idx, src, axis=0):
    return tgt.clone().index_add_(axis, idx, src)

def _segment_sum(src, seg, n):
    out = torch.zeros((n,) + src.shape[1:], dtype=src.dtype)
    return out.index_add_(0, seg, src)

def _pad(x, pw):
    flat = tuple((v for pair in reversed(pw) for v in pair))
    return torch.nn.functional.pad(x, flat)
kernel_name = 'adaLN_cond__softmax_full_mha__dense_activation_relu__prompt'

def setup_inputs():

    _w = lambda a: (lambda t: t.to(torch.bfloat16) if t.is_floating_point() else t)(torch.as_tensor(a))

    def _A_setup():
        B, S, D = (1, 2048, 1024)
        return {'x': _w((lambda *s: torch.randn(*s, dtype=torch.bfloat16) * 0.05)(B, S, D)), 'wqkv': _w((lambda *s: torch.randn(*s, dtype=torch.bfloat16) * 0.05)(D, 3 * D)), 'wo': _w((lambda *s: torch.randn(*s, dtype=torch.bfloat16) * 0.05)(D, D))}
    _A_in = _A_setup()

    def _B_setup():
        B, S, D, Dff = (1, 2048, 1024, 3584)
        return {'x': _w((lambda *s: torch.randn(*s, dtype=torch.bfloat16) * 0.05)(B, S, D)), 'w1': _w((lambda *s: torch.randn(*s, dtype=torch.bfloat16) * 0.05)(D, Dff)), 'w2': _w((lambda *s: torch.randn(*s, dtype=torch.bfloat16) * 0.05)(Dff, D))}
    _B_in = _B_setup()
    return {'A_x': _A_in['x'], 'A_wqkv': _A_in['wqkv'], 'A_wo': _A_in['wo'], 'B_x': _B_in['x'], 'B_w1': _B_in['w1'], 'B_w2': _B_in['w2'], 'c': _w((lambda *s: torch.randn(*s, dtype=torch.bfloat16) * 0.2)(1, 1024) * 8.0), 'w_mod': _w((lambda *s: torch.randn(*s, dtype=torch.bfloat16) * 0.2)(1024, 6 * 1024) * 1024 ** (-0.5) * 8.0)}

def reference(A_x, A_wqkv, A_wo, B_x, B_w1, B_w2, c, w_mod):

    def _A_ref(x, wqkv, wo):
        B, S, D = x.shape
        H = 32
        Dh = D // H
        qkv = (lambda x, *d: x.permute(*d))((x @ wqkv).reshape(B, S, 3, H, Dh), 2, 0, 3, 1, 4)
        q, k, v = (qkv[0], qkv[1], qkv[2])
        scale = Dh ** (-0.5)
        scores = torch.einsum('bhqd,bhkd->bhqk', q, k) * scale
        p = _softmax(scores, axis=-1)
        o = torch.einsum('bhqk,bhkd->bhqd', p, v)
        return (lambda x, *d: x.permute(*d))(o, 0, 2, 1, 3).reshape(B, S, D) @ wo

    def _B_ref(x, w1, w2):
        h = torch.einsum('bsd,df->bsf', x, w1)
        zero = torch.zeros_like(h)
        h = torch.maximum(h, zero)
        return torch.einsum('bsf,fd->bsd', h, w2)
    x = A_x
    mod = (_silu(c) @ w_mod).reshape(c.shape[0], 6, 1, -1)
    sa, ca, ga, sb, cb, gb = (mod[:, 0].clone(), mod[:, 1].clone(), mod[:, 2].clone(), mod[:, 3].clone(), mod[:, 4].clone(), mod[:, 5].clone())
    h = _layernorm(x, axis=-1) * (1 + ca) + sa
    x = x + ga * _A_ref(h, A_wqkv, A_wo)
    h = _layernorm(x, axis=-1) * (1 + cb) + sb
    x = x + gb * _B_ref(h, B_w1, B_w2)
    return x
```

```python
import re

def v(i, n=1):
    return f"v{i}" if n == 1 else f"v[{i}:{i+n-1}]"
def a(i, n=1):
    return f"a{i}" if n == 1 else f"a[{i}:{i+n-1}]"
def s(i, n=1):
    return f"s{i}" if n == 1 else f"s[{i}:{i+n-1}]"

class Kern:
    def __init__(self, name, grid, block, lds, vgpr=128, agpr=0, sgpr=96):
        self.name = name; self.grid = grid; self.block = block; self.lds = lds
        self.vgpr = vgpr; self.agpr = agpr; self.sgpr = sgpr
        self.L = []
        self.nlab = 0
    def __call__(self, txt):
        for line in txt.split("\n"):
            line = line.strip()
            if line:
                self.L.append(line)
    def label(self, nm):
        self.L.append(f"{self.lab(nm)}:")
    def lab(self, nm):
        return f"L_{self.name}_{nm}"
    def nop(self, n):
        while n > 0:
            k = min(n, 16)
            self.L.append(f"s_nop {k-1}")
            n -= k
    def srd(self, d, base, nbytes):
        self(f"s_mov_b32 s{d}, s{base}")
        self(f"s_and_b32 s{d+1}, s{base+1}, 0xffff")
        self(f"s_mov_b32 s{d+2}, {nbytes}")
        self(f"s_mov_b32 s{d+3}, 0x20000")
    def stamp(self, i):
        self.L.append(f";STAMP {i}")
    def instrument(self, kidx, dbgoff):
        L = []
        head = ["s_memtime s[80:81]", "s_memrealtime s[82:83]", "s_load_dwordx2 s[88:89], s[0:1], 80",
                "v_lshrrev_b32 v1, 6, v0", "s_nop 1", "v_readfirstlane_b32 s92, v1", "s_waitcnt lgkmcnt(0)",
                "s_and_b32 s89, s89, 0xffff", "s_mov_b32 s90, 0x10000000", "s_mov_b32 s91, 0x20000",
                "s_lshl_b32 s93, s2, 4", "s_add_u32 s93, s93, s92", "s_lshl_b32 s93, s93, 5",
                f"s_add_u32 s93, s93, {dbgoff + kidx*0x40000}"]
        head += [f"s_mov_b32 s{64+2*i}, s80" for i in range(4)]
        tail = ["s_waitcnt vmcnt(0) lgkmcnt(0)", "s_memtime s[84:85]", "s_memrealtime s[86:87]", "s_waitcnt lgkmcnt(0)",
                "s_sub_u32 s84, s84, s80", "s_getreg_b32 s85, hwreg(HW_REG_XCC_ID)", "s_mov_b64 exec, -1",
                "v_mov_b32 v4, s82", "v_mov_b32 v5, s86", "v_mov_b32 v6, s84", "v_mov_b32 v7, s85", "v_mov_b32 v1, 0"]
        for i in range(4):
            tail += [f"s_sub_u32 s{64+2*i}, s{64+2*i}, s80", f"v_mov_b32 v{8+i}, s{64+2*i}"]
        tail += ["buffer_store_dwordx4 v[4:7], v1, s[88:91], s93 offen",
                 "buffer_store_dwordx4 v[8:11], v1, s[88:91], s93 offen offset:16", "s_endpgm"]
        L += head
        for l in self.L:
            if l == "s_endpgm": L += tail
            elif l.startswith(";STAMPFIRST"):
                L += ["s_cmp_lg_u32 s24, 0", f"s_cbranch_scc1 {self.lab('sf')}", "s_memtime s[66:67]", "s_waitcnt lgkmcnt(0)", f"{self.lab('sf')}:"]
            elif l.startswith(";STAMP"):
                i = int(l.split()[1])
                L += [f"s_memtime s[{64+2*i}:{65+2*i}]", "s_waitcnt lgkmcnt(0)"]
            else: L.append(l)
        self.L = L
        self.sgpr = max(self.sgpr, 96)
    def text(self):
        acc_off = (self.vgpr + 3) // 4 * 4
        nfv = acc_off + self.agpr if self.agpr else self.vgpr
        out = [".text", f".globl {self.name}", ".p2align 8", f".type {self.name},@function", f"{self.name}:"]
        for l in self.L:
            out.append(l if l.endswith(":") else "  " + l)
        out += ['.section .rodata,"a"', ".p2align 6", f".amdhsa_kernel {self.name}",
                f"  .amdhsa_next_free_vgpr {nfv}", f"  .amdhsa_next_free_sgpr {self.sgpr}",
                f"  .amdhsa_accum_offset {acc_off}", "  .amdhsa_group_segment_fixed_size 0",
                "  .amdhsa_kernarg_size 88", "  .amdhsa_user_sgpr_count 2",
                "  .amdhsa_user_sgpr_kernarg_segment_ptr 1", "  .amdhsa_system_sgpr_workgroup_id_x 1",
                "  .amdhsa_float_denorm_mode_32 3",
                ".end_amdhsa_kernel"]
        return "\n".join(out) + "\n"
    def launch_line(self):
        return f"; @launch kernel={self.name} grid=({self.grid},1,1) block=({self.block},1,1) lds={self.lds}"

_REG = re.compile(r"\b([vas])(?:(\d+)|\[(\d+):(\d+)\])")
TRANS = ("v_exp_f32", "v_log_f32", "v_rcp_f32", "v_rsq_f32", "v_sqrt_f32", "v_sin_f32", "v_cos_f32", "v_rcp_iflag_f32")

def regs_of(op):
    out = set()
    op = op.strip()
    for m in _REG.finditer(op):
        k = m.group(1)
        if m.group(2) is not None:
            out.add((k, int(m.group(2))))
        else:
            for i in range(int(m.group(3)), int(m.group(4)) + 1):
                out.add((k, i))
    if re.search(r"\bvcc\b", op): out.add(("s", "vcc"))
    if re.search(r"\bm0\b", op): out.add(("s", "m0"))
    if re.search(r"\bexec\b", op): out.add(("s", "exec"))
    return out

def split_ops(rest):
    ops = []; depth = 0; cur = ""
    for ch in rest:
        if ch == "[": depth += 1
        if ch == "]": depth -= 1
        if ch == "," and depth == 0:
            ops.append(cur); cur = ""
        else:
            cur += ch
    ops.append(cur)
    return [o.strip() for o in ops]

class Ins:
    def __init__(self, txt):
        self.txt = txt
        t = txt.split(";")[0].strip()
        parts = t.split(None, 1)
        self.op = parts[0]
        rest = parts[1] if len(parts) > 1 else ""
        ops = split_ops(rest) if rest else []
        self.ops = ops
        op = self.op
        self.w = set(); self.r = set(); self.cls = "other"; self.ws = 1
        self.srcC = set(); self.srcAB = set(); self.passes = 0; self.storedata = set()
        def opregs(o):
            return regs_of(o.split(" ")[0]) if o else set()
        if op == "s_nop":
            self.ws = int(ops[0], 0) + 1; self.cls = "nop"
        elif op.startswith("v_mfma"):
            self.cls = "mfma"
            self.passes = 8 if "32x32x16" in op else 4
            self.w = opregs(ops[0]); self.srcAB = opregs(ops[1]) | opregs(ops[2]); self.srcC = opregs(ops[3])
            self.r = self.srcAB | self.srcC
        elif op.startswith("v_cmp"):
            self.cls = "valu"; self.w = opregs(ops[0])
            for o in ops[1:]: self.r |= regs_of(o)
            if op.startswith("v_cmpx"): self.w.add(("s", "exec"))
        elif op.startswith("v_readfirstlane") or op.startswith("v_readlane"):
            self.cls = "valu"; self.w = opregs(ops[0])
            for o in ops[1:]: self.r |= regs_of(o)
        elif op.startswith("v_permlane") and "swap" in op:
            self.cls = "valu"; self.w = opregs(ops[0]) | opregs(ops[1]); self.r = set(self.w)
        elif op.startswith("v_"):
            self.cls = "valu"; self.w = opregs(ops[0])
            k = 1
            if op.startswith(("v_add_co", "v_sub_co", "v_addc_co", "v_subb_co", "v_div_scale", "v_mad_u64")):
                self.w |= opregs(ops[1]); k = 2
            for o in ops[k:]: self.r |= regs_of(o.split(" ")[0] if not o.startswith(("-", "|", "abs")) else o.split(" ")[0])
            if op.startswith(("v_fmac", "v_mac", "v_dot2c", "v_pk_fmac")) or "dst_unused:UNUSED_PRESERVE" in t or "_dpp" in op:
                self.r |= self.w
            if op.startswith("v_cndmask") and len(ops) == 3: self.r.add(("s", "vcc"))
        elif op.startswith(("buffer_load", "global_load")):
            self.cls = "vmem"
            if t.rstrip().endswith(" lds") or " lds " in t or "load_lds" in op:
                self.cls = "dma"
                for o in ops: self.r |= opregs(o)
                self.r.add(("s", "m0"))
            else:
                self.w = opregs(ops[0])
                for o in ops[1:]: self.r |= opregs(o)
        elif op.startswith(("buffer_store", "buffer_atomic")):
            self.cls = "vmem"
            for o in ops: self.r |= opregs(o)
            if "x4" in op or "x3" in op: self.storedata = opregs(ops[0])
        elif op.startswith(("global_store", "global_atomic")):
            self.cls = "vmem"
            for o in ops: self.r |= opregs(o)
            if "x4" in op or "x3" in op: self.storedata = opregs(ops[1])
        elif op.startswith("ds_"):
            self.cls = "ds"
            if op.startswith(("ds_read", "ds_bpermute", "ds_permute", "ds_swizzle")) or "rtn" in op:
                self.w = opregs(ops[0])
                for o in ops[1:]: self.r |= opregs(o)
            else:
                for o in ops: self.r |= opregs(o)
        elif op.startswith("s_"):
            self.cls = "salu"
            if op.startswith(("s_cmp", "s_bitcmp", "s_cbranch", "s_branch", "s_waitcnt", "s_barrier", "s_endpgm", "s_setprio", "s_sleep")):
                for o in ops: self.r |= regs_of(o) if not op.startswith(("s_cbranch", "s_branch")) else set()
            else:
                self.w = opregs(ops[0]) if ops else set()
                for o in ops[1:]: self.r |= regs_of(o)
                if "saveexec" in op: self.w.add(("s", "exec"))
        self.trans = op.replace("_e32", "").replace("_e64", "") in TRANS
        self.dpp = "_dpp" in op
        self.perml = op.startswith("v_permlane")
        self.rdlane = op.startswith(("v_readfirstlane", "v_readlane"))

def need(p, c):
    n = 0
    pv = {x for x in p.w if x[0] in "va"}
    ps = {x for x in p.w if x[0] == "s"}
    if p.cls == "valu":
        if c.cls == "mfma" and pv & c.r: n = max(n, 2)
        if c.cls == "mfma" and ("s", "exec") in p.w: n = max(n, 4)
        if c.dpp and pv & c.r: n = max(n, 2)
        if c.dpp and ("s", "exec") in p.w: n = max(n, 5)
        if c.perml and pv & c.r: n = max(n, 2)
        if c.rdlane and pv & c.r: n = max(n, 1)
        if p.trans and c.cls == "valu" and not c.trans and pv & c.r: n = max(n, 1)
        if ps:
            if c.cls in ("vmem", "dma") and ps & c.r: n = max(n, 5)
            if c.cls == "valu" and ps & c.r: n = max(n, 4 if c.rdlane else 2)
            if c.cls == "salu" and ps & c.r: n = max(n, 1)
        if "sdwa" in p.op or "op_sel" in p.txt:
            if c.cls == "valu" and pv & (c.r | c.w): n = max(n, 1)
    if p.cls == "salu":
        if ("s", "m0") in p.w and c.cls == "dma": n = max(n, 1)
    if p.cls == "mfma":
        big = 12 if p.passes == 8 else 8
        if c.cls == "mfma":
            if p.w & c.srcAB: n = max(n, big)
            if p.w & c.srcC:
                if not (p.w == c.srcC and p.passes == c.passes): n = max(n, 10 if p.passes == 8 else 6)
            if p.w & c.w and not (p.w == c.w and p.passes == c.passes): n = max(n, big)
        if c.cls in ("valu", "vmem", "ds", "dma"):
            if p.w & (c.r | c.w): n = max(n, big)
        if c.cls == "valu" and p.srcC & c.w: n = max(n, 7 if p.passes == 8 else 3)
    if p.storedata and c.cls in ("valu", "vmem", "ds", "mfma") and p.storedata & c.w: n = max(n, 2)
    return n

def check(kern, verbose=True):
    lines = kern.L
    ins = []; labels = {}
    for l in lines:
        if l.endswith(":"):
            labels[l[:-1]] = len(ins)
        elif l.startswith(".") or l.startswith(";"):
            continue
        else:
            ins.append(Ins(l))
    def succ(i):
        x = ins[i]
        if x.op == "s_endpgm": return []
        if x.op == "s_branch": return [labels[x.ops[0]]]
        if x.op.startswith("s_cbranch"): return [i + 1, labels[x.ops[0]]]
        return [i + 1]
    errs = []
    for i, p in enumerate(ins):
        if p.cls not in ("valu", "mfma", "salu", "vmem"): continue
        stack = [(j, 0) for j in succ(i)]
        seen = set()
        while stack:
            j, d = stack.pop()
            if j >= len(ins) or d >= 13 or (j, d) in seen: continue
            seen.add((j, d))
            c = ins[j]
            n = need(p, c)
            if n > d:
                errs.append(f"{kern.name}: need {n} have {d}: [{i}] {p.txt}  ->  [{j}] {c.txt}")
            for k in succ(j):
                stack.append((k, d + c.ws))
    for x in ins:
        for (k, i) in x.r | x.w:
            if k == "v" and i >= kern.vgpr: errs.append(f"{kern.name}: v{i} >= vgpr {kern.vgpr}: {x.txt}")
            if k == "a" and i >= kern.agpr: errs.append(f"{kern.name}: a{i} >= agpr {kern.agpr}: {x.txt}")
            if k == "s" and isinstance(i, int) and i >= kern.sgpr: errs.append(f"{kern.name}: s{i} >= sgpr: {x.txt}")
    errs = sorted(set(errs))
    if verbose:
        for e in errs[:40]: print("HAZARD", e)
    return errs
```

```python
import sys, struct
from asmlib import *

NAME = "adaLN_cond__softmax_full_mha__dense_activation_relu__prompt"
MODF = 0x0
MODB = 0x8000
RS   = 0xC000
SC   = 0xE000
LNS  = 0x10000
FLG  = 0x18000
MODP = 0x20000
ST   = 0x80000
import os
PADU = int(os.environ.get("PADU", "2"))
AU = 128 + PADU
HU = 448 + PADU
H1   = 0x100000
QB   = 0x600000
KVB  = 0xA00000
AO   = 0x1200000
X1   = 0x1700000
YB   = 0x1C00000
HF   = 0x2100000
W1P  = 0x3100000
WOP  = 0x3900000
W2P  = 0x3C00000
XCH  = 0x4400000
DBGOFF = 0x8000000
WS_BYTES = 0x10000000
W1U = 130

def f32bits(x):
    return struct.unpack("<I", struct.pack("<f", x))[0]
LOG2E = 1.4426950408889634

def prologue(k, nwg, ptrs):
    k(f"s_cmp_ge_u32 s2, {nwg}")
    k(f"s_cbranch_scc1 {k.lab('end')}")
    for sr, off in ptrs:
        k(f"s_load_dwordx2 {s(sr,2)}, s[0:1], {off}")
    k("v_lshrrev_b32 v1, 6, v0")
    k("v_and_b32 v0, 63, v0")
    k("v_readfirstlane_b32 s3, v1")

def end(k):
    k.label("end")
    k("s_endpgm")

def tr_colbytes(k, dst, tmp):
    k(f"v_and_b32 v{dst}, 16, v0")
    k(f"v_lshlrev_b32 v{dst}, 1, v{dst}")
    k(f"v_and_b32 v{tmp}, 1, v0")
    k(f"v_lshl_add_u32 v{dst}, v{tmp}, 4, v{dst}")
    k(f"v_and_b32 v{tmp}, 2, v0")
    k(f"v_lshl_add_u32 v{dst}, v{tmp}, 2, v{dst}")

MF32 = "v_mfma_f32_32x32x16_bf16"
MF16 = "v_mfma_f32_16x16x32_bf16"


SC1 = " sc1"

def w_touch(k, rowbase, dst, wave_s, srd, tv):
    k(f"s_lshr_b32 s40, s2, 3")
    k(f"s_lshl_b32 s40, s40, 4")
    k(f"s_add_u32 s40, s40, {rowbase}")
    k(f"s_mul_i32 s40, s40, 6144")
    k(f"s_lshl_b32 s41, {wave_s}, 11")
    k(f"s_add_u32 s40, s40, s41")
    k(f"s_bfe_u32 s41, s2, 0x20001")
    k(f"s_lshl_b32 s41, s41, 9")
    k(f"s_add_u32 s40, s40, s41")
    k(f"v_lshrrev_b32 v{tv}, 2, v0")
    k(f"v_mul_u32_u24 v{tv}, 6144, v{tv}")
    k(f"v_and_b32 v{tv+1}, 3, v0")
    k(f"v_lshl_add_u32 v{tv}, v{tv+1}, 7, v{tv}")
    k(f"buffer_load_dword v{dst}, v{tv}, {srd}, s40 offen")
```

```python
from common import *

def row16_sum(k, regs, rots=(8, 4, 2, 1)):
    k.nop(2)
    for rot in rots:
        if len(regs) < 3: k.nop(2 - (len(regs) - 1))
        for r in regs:
            k(f"v_add_f32_dpp v{r}, v{r}, v{r} row_ror:{rot} row_mask:0xf bank_mask:0xf")

def half_sum(k, r, t):
    row16_sum(k, [r])
    k(f"v_mov_b32 v{t}, v{r}")
    k.nop(2)
    k(f"v_permlane16_swap_b32 v{t}, v{r}")
    k(f"v_add_f32 v{r}, v{r}, v{t}")

def k_mod():
    k = Kern("mod_kernel", 256, 512, 12288, vgpr=128)
    k(f"s_cmp_ge_u32 s2, 256")
    k(f"s_cbranch_scc1 {k.lab('end')}")
    k("s_load_dwordx4 s[4:7], s[0:1], 48")
    k("s_load_dwordx2 s[20:21], s[0:1], 80")
    k("s_load_dwordx4 s[24:27], s[0:1], 0")
    k("v_lshrrev_b32 v1, 6, v0")
    k("v_and_b32 v2, 63, v0")
    k("v_readfirstlane_b32 s3, v1")
    k("s_and_b32 s22, s2, 31")
    k("s_lshr_b32 s23, s2, 5")
    k("s_cmp_ge_u32 s3, 4")
    k(f"s_cbranch_scc1 {k.lab('stats')}")
    k("v_lshrrev_b32 v5, 3, v0")
    k("v_and_b32 v6, 7, v0")
    k("v_mul_u32_u24 v3, 49152, v5")
    k("v_lshl_add_u32 v3, v6, 4, v3")
    k("v_lshlrev_b32 v4, 3, v5")
    k(f"s_mul_i32 s29, s23, {128*12288}")
    k("s_lshl_b32 s30, s22, 7")
    k("s_add_u32 s29, s29, s30")
    k("s_lshl_b32 s28, s23, 8")
    k("s_waitcnt lgkmcnt(0)")
    k.stamp(0)
    k.srd(8, 4, 2048)
    k("buffer_load_dwordx2 v[8:9], v4, s[8:11], s28 offen")
    k.srd(12, 6, 1024*6144*2)
    for i in range(12):
        k(f"buffer_load_dwordx4 {v(64+4*i,4)}, v3, s[12:15], s29 offen")
        if i < 11: k("s_add_u32 s29, s29, 4096")
    k.srd(16, 20, WS_BYTES)
    k(f"s_mov_b32 s29, {f32bits(-LOG2E):#x}")
    k("v_lshrrev_b32 v7, 4, v0")
    k("v_lshlrev_b32 v7, 8, v7")
    k("v_lshl_add_u32 v7, v6, 5, v7")
    k("s_waitcnt vmcnt(12)")
    for j in range(2):
        k(f"v_lshlrev_b32 v{16+2*j}, 16, v{8+j}")
        k(f"v_and_b32 v{17+2*j}, 0xffff0000, v{8+j}")
    for j in range(4): k(f"v_mul_f32 v{20+j}, s29, v{16+j}")
    for j in range(4): k(f"v_exp_f32 v{20+j}, v{20+j}")
    for j in range(4): k(f"v_add_f32 v{20+j}, 1.0, v{20+j}")
    for j in range(4): k(f"v_rcp_f32 v{20+j}, v{20+j}")
    for j in range(4): k(f"v_mul_f32 v{16+j}, v{16+j}, v{20+j}")
    for j in range(2): k(f"v_cvt_pk_bf16_f32 v{8+j}, v{16+2*j}, v{17+2*j}")
    for j in range(2):
        k(f"v_lshlrev_b32 v{16+2*j}, 16, v{8+j}")
        k(f"v_and_b32 v{17+2*j}, 0xffff0000, v{8+j}")
    for i in range(12):
        r, th = i // 3, i % 3
        k(f"s_waitcnt vmcnt({11-i})")
        for j in range(4):
            k(f"v_lshlrev_b32 v{48+2*j}, 16, v{64+4*i+j}")
            k(f"v_and_b32 v{49+2*j}, 0xffff0000, v{64+4*i+j}")
        for j in range(8):
            if r == 0: k(f"v_mul_f32 v{24+8*th+j}, v{48+j}, v{16+r}")
            else:      k(f"v_fmac_f32 v{24+8*th+j}, v{48+j}, v{16+r}")
    k.stamp(1)
    row16_sum(k, list(range(24, 48)), rots=(8,))
    for th in range(3):
        k(f"ds_write_b128 v7, {v(24+8*th,4)} offset:{th*4096}")
        k(f"ds_write_b128 v7, {v(28+8*th,4)} offset:{th*4096+16}")
    k("s_waitcnt lgkmcnt(0)")
    k.stamp(2)
    k("s_barrier")
    k.stamp(3)
    k("s_cmp_eq_u32 s3, 3")
    k(f"s_cbranch_scc1 {k.lab('end')}")
    k("v_lshlrev_b32 v6, 2, v2")
    k("s_lshl_b32 s33, s3, 12")
    k("v_add_u32 v7, s33, v6")
    for i in range(16):
        k(f"ds_read_b32 v{40+i}, v7 offset:{i*256}")
    k(f"s_mul_i32 s33, s23, {6144*4}")
    k("s_lshl_b32 s34, s22, 8")
    k("s_add_u32 s33, s33, s34")
    k("s_lshl_b32 s34, s3, 13")
    k("s_add_u32 s33, s33, s34")
    k(f"s_add_u32 s33, s33, {MODP}")
    k("s_waitcnt lgkmcnt(0)")
    for st in (8, 4, 2, 1):
        for i in range(st):
            k(f"v_add_f32 v{40+i}, v{40+i}, v{40+i+st}")
    k("buffer_store_dword v40, v6, s[16:19], s33 offen" + SC1)
    k("s_endpgm")
    k.label("stats")
    k("s_and_b32 s30, s2, 7")
    k("s_lshl_b32 s30, s30, 8")
    k("s_and_b32 s31, s2, 0xf8")
    k("s_add_u32 s30, s30, s31")
    k("s_sub_u32 s31, s3, 4")
    k("s_lshl_b32 s31, s31, 1")
    k("s_add_u32 s30, s30, s31")
    k("s_lshl_b32 s31, s30, 11")
    k("v_lshrrev_b32 v3, 5, v2")
    k("v_and_b32 v4, 31, v2")
    k("v_lshlrev_b32 v5, 11, v3")
    k("v_lshl_add_u32 v5, v4, 4, v5")
    k("s_waitcnt lgkmcnt(0)")
    k.srd(8, 24, 2048*1024*2)
    for i in range(4):
        k(f"buffer_load_dwordx4 {v(16+4*i,4)}, v5, s[8:11], s31 offen offset:{i*512}")
    k.srd(16, 20, WS_BYTES)
    k("s_cmp_lg_u32 s3, 4")
    k(f"s_cbranch_scc1 {k.lab('noflag')}")
    k("v_lshlrev_b32 v6, 2, v4")
    k("v_mov_b32 v7, 0")
    k("s_lshl_b32 s28, s2, 7")
    k(f"s_add_u32 s28, s28, {FLG}")
    k("buffer_store_dword v7, v6, s[16:19], s28 offen" + SC1)
    k.label("noflag")
    k.srd(12, 26, 1024*3072*2)
    k("v_mov_b32 v0, v2")
    k("s_and_b32 s43, s3, 3")
    k("s_cmp_eq_u32 s43, 3")
    k("s_cselect_b32 s14, 0, s14")
    if os.environ.get("NOWT"): k("s_mov_b32 s14, 0")
    w_touch(k, 0, 90, "s43", "s[12:15]", 10)
    k(f"s_add_u32 s40, s40, {512*6144}")
    k("buffer_load_dword v91, v10, s[12:15], s40 offen")
    k("s_waitcnt vmcnt(2)")
    for j in range(16):
        k(f"v_lshlrev_b32 v{32+2*j}, 16, v{16+j}")
        k(f"v_and_b32 v{33+2*j}, 0xffff0000, v{16+j}")
    for j in range(16):
        k(f"v_add_f32 v{64+j}, v{32+2*j}, v{33+2*j}")
    for st in (8, 4, 2, 1):
        for i in range(st):
            k(f"v_add_f32 v{64+i}, v{64+i}, v{64+i+st}")
    half_sum(k, 64, 65)
    k(f"v_mul_f32 v70, {f32bits(1/1024):#x}, v64")
    k("s_barrier")
    for j in range(32):
        k(f"v_sub_f32 v{32+j}, v{32+j}, v70")
    for j in range(4):
        k(f"v_mul_f32 v{64+j}, v{32+j}, v{32+j}")
    for j in range(4, 32):
        k(f"v_fmac_f32 v{64+j%4}, v{32+j}, v{32+j}")
    k("v_add_f32 v64, v64, v65")
    k("v_add_f32 v66, v66, v67")
    k("v_add_f32 v64, v64, v66")
    half_sum(k, 64, 65)
    k(f"v_mov_b32 v73, {f32bits(1e-5):#x}")
    k(f"v_fmac_f32 v73, {f32bits(1/1024):#x}, v64")
    k("v_rsq_f32 v73, v73")
    k("v_lshlrev_b32 v6, 3, v3")
    k("v_mov_b32 v72, v70")
    k("s_lshl_b32 s28, s30, 3")
    k(f"s_add_u32 s28, s28, {LNS}")
    k("buffer_store_dwordx2 v[72:73], v6, s[16:19], s28 offen" + SC1)
    end(k)
    return k

def k_ln1():
    k = Kern("ln1_kernel", 256, 256, 1024, vgpr=128)
    prologue(k, 256, [(20, 80)])
    k("s_load_dwordx4 s[4:7], s[0:1], 0")
    k("s_and_b32 s22, s2, 7")
    k("s_lshl_b32 s22, s22, 2")
    k("s_bfe_u32 s23, s2, 0x20003")
    k("s_add_u32 s22, s22, s23")
    k("s_lshr_b32 s23, s2, 5")
    k("s_lshl_b32 s23, s23, 2")
    k("s_add_u32 s23, s23, s3")
    k("v_lshlrev_b32 v3, 11, v0")
    k("v_lshlrev_b32 v4, 3, v0")
    k("v_lshrrev_b32 v5, 5, v0")
    k("v_and_b32 v6, 31, v0")
    k("v_lshlrev_b32 v7, 12, v5")
    k("v_lshl_add_u32 v7, v6, 2, v7")
    k("s_lshl_b32 s24, s22, 17")
    k("s_lshl_b32 s25, s23, 6")
    k("s_add_u32 s24, s24, s25")
    k("s_lshl_b32 s25, s23, 7")
    k(f"s_add_u32 s25, s25, {MODP}")
    k("s_lshl_b32 s26, s22, 9")
    k(f"s_add_u32 s26, s26, {LNS}")
    k("s_waitcnt lgkmcnt(0)")
    k.stamp(0)
    k.srd(12, 20, WS_BYTES)
    for i in range(8):
        k(f"buffer_load_dword v{32+i}, v7, s[12:15], s25 offen")
        if i < 7: k("s_add_u32 s25, s25, 24576")
    k.srd(8, 4, 2048*1024*2)
    k("buffer_load_dwordx2 v[8:9], v4, s[12:15], s26 offen")
    for i in range(4):
        k(f"buffer_load_dwordx4 {v(16+4*i,4)}, v3, s[8:11], s24 offen offset:{i*16}")
    k("v_and_b32 v10, 15, v0")
    k("v_lshrrev_b32 v11, 4, v0")
    k("v_mul_u32_u24 v11, 24576, v11")
    k("v_lshl_add_u32 v11, v10, 2, v11")
    k("s_lshl_b32 s30, s2, 6")
    k(f"s_add_u32 s30, s30, {MODP+8192}")
    k("s_cmp_eq_u32 s3, 0")
    k("s_cselect_b32 s30, s30, 0x40000000")
    k(f"s_add_u32 s31, s30, {4*24576}")
    k("buffer_load_dword v120, v11, s[12:15], s30 offen")
    k("buffer_load_dword v121, v11, s[12:15], s31 offen")
    k(f"v_mul_u32_u24 v12, {AU*512}, v5")
    k("v_lshl_add_u32 v12, v6, 4, v12")
    k(f"s_mul_i32 s27, s22, {2*AU*512}")
    k("s_lshl_b32 s28, s23, 11")
    k("s_add_u32 s27, s27, s28")
    k(f"s_add_u32 s27, s27, {H1}")
    k("s_lshl_b32 s28, s3, 8")
    k("v_lshlrev_b32 v13, 2, v0")
    k("v_add_u32 v13, s28, v13")
    k("v_mov_b32 v14, s28")
    k("v_cvt_f32_u32 v15, v5")
    k("s_waitcnt vmcnt(7)")
    k.stamp(1)
    for st in (4, 2, 1):
        for i in range(st):
            k(f"v_add_f32 v{32+i}, v{32+i}, v{32+i+st}")
    k("v_cvt_pk_bf16_f32 v32, v32, v32")
    k("v_lshlrev_b32 v32, 16, v32")
    k("v_add_f32 v32, v32, v15")
    k("v_cvt_pk_bf16_f32 v32, v32, v32")
    k("v_lshlrev_b32 v32, 16, v32")
    k("ds_write_b32 v13, v32")
    k("s_waitcnt lgkmcnt(0)")
    for i in range(16):
        k(f"ds_read_b128 {v(48+4*i,4)}, v14 offset:{i*16}")
    k("s_waitcnt vmcnt(0)")
    k.stamp(2)
    k("v_mul_f32 v8, v8, v9")
    for d in range(16):
        k(f"v_lshlrev_b32 v{112+2*(d%2)}, 16, v{16+d}")
        k(f"v_and_b32 v{113+2*(d%2)}, 0xffff0000, v{16+d}")
        k(f"v_fma_f32 v{112+2*(d%2)}, v{112+2*(d%2)}, v9, -v8")
        k(f"v_fma_f32 v{113+2*(d%2)}, v{113+2*(d%2)}, v9, -v8")
        if d == 0: k("s_waitcnt lgkmcnt(0)")
        k(f"v_fmac_f32 v{48+2*d}, v{112+2*(d%2)}, v{80+2*d}")
        k(f"v_fmac_f32 v{49+2*d}, v{113+2*(d%2)}, v{81+2*d}")
        k(f"v_cvt_pk_bf16_f32 v{32+d}, v{48+2*d}, v{49+2*d}")
        if d % 4 == 3:
            k(f"buffer_store_dwordx4 {v(32+d-3,4)}, v12, s[12:15], s27 offen offset:{(d//4)*512}" + SC1)
    k.stamp(3)
    k("s_cmp_lg_u32 s3, 0")
    k(f"s_cbranch_scc1 {k.lab('end')}")
    k("v_add_f32 v120, v120, v121")
    k("v_mov_b32 v121, v120")
    k.nop(2)
    k("v_permlane16_swap_b32 v121, v120")
    k("v_add_f32 v120, v120, v121")
    k("v_mov_b32 v121, v120")
    k.nop(2)
    k("v_permlane32_swap_b32 v121, v120")
    k("v_add_f32 v120, v120, v121")
    k("v_cvt_pk_bf16_f32 v121, v120, v120")
    k("v_lshlrev_b32 v120, 16, v121")
    k("s_lshr_b32 s30, s2, 6")
    k("s_cmp_eq_u32 s30, 2")
    k("s_cselect_b32 s31, 1.0, 0")
    k("v_add_f32 v120, s31, v120")
    k("v_cvt_pk_bf16_f32 v121, v120, v120")
    k("v_lshlrev_b32 v120, 16, v121")
    k("v_lshlrev_b32 v11, 2, v10")
    k("v_lshlrev_b32 v10, 1, v10")
    k("s_lshl_b32 s30, s2, 6")
    k(f"s_add_u32 s30, s30, {MODF+8192}")
    k("s_lshl_b32 s31, s2, 5")
    k(f"s_add_u32 s31, s31, {MODB+4096}")
    k("buffer_store_dword v120, v11, s[12:15], s30 offen" + SC1)
    k("buffer_store_short v121, v10, s[12:15], s31 offen" + SC1)
    end(k)
    return k
```

```python
import os
from common import *

def env(name, d): return int(os.environ.get(name, d))

def k_gemm(kind):
    cfg = {
        "qkv":  dict(NTL=6, K32=32, wpan=6, ptr=8,    aux=1024*3072*2, SUBS=env("QKV_SUBS", 1)),
        "wo":   dict(NTL=2, K32=32, wpan=2, ptr=0,    aux=2048*1024*2, SUBS=env("WO_SUBS", 2)),
        "ffn1": dict(NTL=7, K32=32, wpan=7, ptr=None, aux=0,           SUBS=env("FFN1_SUBS", 1)),
        "ffn2": dict(NTL=4, K32=56, wpan=4, ptr=64,   aux=2048*1024*2, SUBS=env("FFN2_SUBS", 2)),
    }[kind]
    NTL, wpan, SUBS = cfg["NTL"], cfg["wpan"], cfg["SUBS"]
    NT = cfg["K32"] // SUBS
    PAN = 2048*SUBS
    STG = (4 + wpan)*PAN
    WOFF = 4*PAN
    NS = (163840 - (4096 if kind == "ffn1" else 0)) // STG
    NS = min(NS, env(kind.upper()+"_NS", 99))
    XW = NS*STG
    XX = ((NT - NS) % NS)*STG
    lds = NS*STG + (4096 if kind == "ffn1" else 0)
    k = Kern(kind+"_kernel", 256, 512, lds, vgpr=256)
    ptrs = [(6, 80)] + ([(4, cfg["ptr"])] if cfg["ptr"] is not None else [])
    prologue(k, 256, ptrs)
    k("s_and_b32 s16, s2, 7")
    k("s_lshr_b32 s17, s2, 3")
    if kind in ("qkv", "ffn1"):
        k("s_and_b32 s18, s16, 1")
        k("s_lshl_b32 s18, s18, 3")
        k("s_and_b32 s19, s17, 7")
        k("s_add_u32 s18, s18, s19")
        k("s_lshr_b32 s19, s16, 1")
        k("s_lshl_b32 s19, s19, 2")
        k("s_lshr_b32 s17, s17, 3")
        k("s_add_u32 s19, s19, s17")
    elif kind == "wo":
        k("s_and_b32 s18, s16, 3")
        k("s_lshl_b32 s18, s18, 2")
        k("s_and_b32 s19, s17, 3")
        k("s_add_u32 s18, s18, s19")
        k("s_lshr_b32 s19, s16, 2")
        k("s_lshl_b32 s19, s19, 3")
        k("s_lshr_b32 s17, s17, 2")
        k("s_add_u32 s19, s19, s17")
    else:
        k("s_lshr_b32 s18, s16, 1")
        k("s_lshl_b32 s18, s18, 2")
        k("s_and_b32 s19, s17, 3")
        k("s_add_u32 s18, s18, s19")
        k("s_lshr_b32 s19, s17, 2")
        k("s_and_b32 s17, s16, 1")
    k("v_lshlrev_b32 v2, 4, v0")
    Xb, XU = {"qkv": (H1, AU), "wo": (AO, AU), "ffn1": (YB, AU), "ffn2": (HF, HU)}[kind]
    k("s_cmp_ge_u32 s3, 4")
    k(f"s_cbranch_scc1 {k.lab('compute')}")
    if kind == "qkv":
        k("s_lshl_b32 s21, s18, 2")
        k("s_add_u32 s21, s21, s3")
        k(f"s_mul_i32 s21, s21, {AU*512}")
        k(f"s_add_u32 s21, s21, {H1}")
        k("v_add_u32 v3, s21, v2")
        k("v_lshrrev_b32 v4, 3, v0")
        k("v_and_b32 v5, 2, v4")
        k("v_and_b32 v6, 7, v0")
        k("v_xor_b32 v5, v5, v6")
        k("v_lshlrev_b32 v5, 4, v5")
        k("v_mul_u32_u24 v4, 6144, v4")
        k("s_lshl_b32 s23, s19, 7")
        k(f"s_mul_i32 s24, s3, {8*SUBS*6144}")
        k("s_add_u32 s23, s23, s24")
        if SUBS == 1:
            k("s_and_b32 s24, s3, 1")
            k("s_lshl_b32 s24, s24, 6")
            k("v_xor_b32 v5, s24, v5")
            k("v_add3_u32 v8, v4, v5, s23")
            for g in (1, 2):
                k(f"v_add_u32 v{8+g}, {g*2048}, v8")
        else:
            k("v_add3_u32 v8, v4, v5, s23")
            k("v_xor_b32 v5, 64, v5")
            k(f"s_add_u32 s23, s23, {8*6144}")
            k("v_add3_u32 v9, v4, v5, s23")
            for g in (1, 2):
                k(f"v_add_u32 v{8+2*g}, {g*2048}, v8")
                k(f"v_add_u32 v{9+2*g}, {g*2048}, v9")
        k(f"s_mul_i32 s25, s3, {PAN}")
        k(f"s_mul_i32 s26, s3, {1024*SUBS}")
        k(f"s_add_u32 s26, s26, {WOFF}")
        k("s_mov_b32 s27, 0")
        k("s_mov_b32 s28, 0")
        k("s_mov_b32 s29, 0")
        variants = [5*SUBS]
        def issue(NL):
            k("s_add_u32 m0, s27, s25")
            k("s_add_u32 s30, s27, s26")
            for j in range(2*SUBS):
                k(f"buffer_load_dwordx4 v3, s[8:11], s28 offen offset:{j*1024} lds")
            for g in range(3):
                for r in range(SUBS):
                    k(f"s_add_u32 m0, s30, {g*2*PAN+r*1024}")
                    k("s_nop 0")
                    k(f"buffer_load_dwordx4 v{8+SUBS*g+r}, s[12:15], s29 offen lds")
            k(f"s_add_u32 s28, s28, {PAN}")
            k(f"s_add_u32 s29, s29, {32*SUBS*6144}")
            k(f"s_add_u32 s27, s27, {STG}")
            k(f"s_cmp_eq_u32 s27, {NS*STG}")
            k("s_cselect_b32 s27, 0, s27")
    else:
        Wb, WU = {"wo": (WOP, AU), "ffn1": (W1P, W1U), "ffn2": (W2P, HU)}[kind]
        k("s_lshl_b32 s25, s3, 10")
        k(f"s_mul_i32 s22, s18, {4*XU*512}")
        k(f"s_add_u32 s22, s22, {Xb}")
        k(f"s_mul_i32 s21, s19, {wpan*WU*512}")
        k(f"s_add_u32 s21, s21, {Wb}")
        nch = (4 + wpan)*2*SUBS
        nmax = (nch + 3)//4
        if SUBS == 2:
            k("v_add_u32 v3, s25, v2")
            k("v_add_u32 v8, s22, v3")
            for p in range(1, 4): k(f"v_add_u32 v{8+p}, {p*XU*512}, v8")
            k("v_add_u32 v12, s21, v3")
            for j in range(1, wpan): k(f"v_add_u32 v{12+j}, {j*WU*512}, v12")
            variants = [nmax]
        else:
            k("s_and_b32 s23, s25, 1024")
            k("v_add_u32 v3, s23, v2")
            k("s_lshr_b32 s23, s3, 1")
            k(f"s_mul_i32 s24, s23, {XU*512}")
            k("s_add_u32 s24, s24, s22")
            k("v_add_u32 v8, s24, v3")
            k(f"v_add_u32 v9, {2*XU*512}, v8")
            k(f"s_mul_i32 s24, s23, {WU*512}")
            k("s_add_u32 s24, s24, s21")
            k("v_add_u32 v10, s24, v3")
            for j in range(3, nmax): k(f"v_add_u32 v{8+j}, {(j-2)*2*WU*512}, v10")
            variants = [nmax] if nch % 4 == 0 else [nmax, nmax-1]
        k("s_mov_b32 s27, s25")
        k(f"s_add_u32 s26, s25, {NS*STG}")
        if kind == "ffn2": k(f"s_mul_i32 s28, s17, {NT*PAN}")
        else: k("s_mov_b32 s28, 0")
        def issue(NL):
            for p in range(NL):
                k(f"s_add_u32 m0, s27, {p*4096}")
                k("s_nop 0")
                k(f"buffer_load_dwordx4 v{8+p}, s[8:11], s28 offen lds")
            k(f"s_add_u32 s28, s28, {PAN}")
            k(f"s_add_u32 s27, s27, {STG}")
            k("s_cmp_eq_u32 s27, s26")
            k("s_cselect_b32 s27, s25, s27")
    k("s_mov_b32 s31, 0")
    k("s_waitcnt lgkmcnt(0)")
    k.srd(8, 6, WS_BYTES)
    if kind == "qkv": k.srd(12, 4, cfg["aux"])
    if kind == "ffn1" and len(variants) == 1: variants = variants*2
    if len(variants) == 2:
        k("s_cmp_ge_u32 s3, 2")
        k(f"s_cbranch_scc1 {k.lab('lloop1')}")
    for vi, NL in enumerate(variants):
        assert NL*(NS-1) <= 63, (kind, NL, NS)
        k.label(f"lloop{vi}")
        k(f"s_cmp_lt_u32 s31, {NS-1}")
        k(f"s_cbranch_scc1 {k.lab(f'lskip{vi}')}")
        k(f"s_waitcnt vmcnt({NL*(NS-2)})")
        k("s_barrier")
        k.label(f"lskip{vi}")
        issue(NL)
        k("s_add_u32 s31, s31, 1")
        k(f"s_cmp_lt_u32 s31, {NT}")
        k(f"s_cbranch_scc1 {k.lab(f'lloop{vi}')}")
        extra = 0
        if kind == "ffn1":
            k("v_lshrrev_b32 v20, 5, v0")
            k(f"v_mul_u32_u24 v20, {W1U*512-512}, v20")
            k("v_add_u32 v20, v20, v2")
            k(f"s_mul_i32 s40, s3, {2*W1U*512}")
            k("s_add_u32 s40, s40, s21")
            k(f"s_add_u32 s40, s40, {128*512}")
            k(f"s_add_u32 m0, s25, {XW}")
            k("v_lshlrev_b32 v21, 3, v0")
            k("buffer_load_dwordx4 v20, s[8:11], s40 offen lds")
            k("s_and_b32 s41, s3, 1")
            k("v_lshrrev_b32 v34, 5, v0")
            k("v_mul_u32_u24 v34, 1536, v34")
            k("v_add_u32 v34, v34, v2")
            k("s_lshl_b32 s40, s41, 12")
            k(f"s_add_u32 s40, s40, {XX}")
            k("v_add_u32 v34, s40, v34")
            extra = 1
            if vi == 0:
                k("s_lshl_b32 s42, s18, 1")
                k("s_add_u32 s42, s42, s41")
                k("s_lshl_b32 s43, s42, 14")
                k(f"s_add_u32 s43, s43, {ST}")
                for i in range(32):
                    k(f"buffer_load_dwordx2 {v(64+2*i,2)}, v21, s[8:11], s43 offen offset:{(i%8)*512}")
                    if i % 8 == 7 and i < 31: k("s_add_u32 s43, s43, 4096")
                extra = 33
        for j in range(NS-1):
            last = j == NS-2
            if kind == "ffn1" and last:
                k("s_waitcnt vmcnt(0)")
                if vi == 0:
                    for st in (16, 8, 4, 2, 1):
                        for i in range(st):
                            k(f"v_add_f32 v{64+2*i}, v{64+2*i}, v{64+2*(i+st)}")
                            k(f"v_add_f32 v{65+2*i}, v{65+2*i}, v{65+2*(i+st)}")
                k("s_barrier")
            else:
                k(f"s_waitcnt vmcnt({min(63, NL*(NS-2-j)+extra)})")
                k("s_barrier")
        if kind == "ffn1":
            if vi == 0:
                k(f"v_mul_f32 v28, {f32bits(-1/1024):#x}, v64")
                k(f"v_mul_f32 v29, {f32bits(1/1024):#x}, v65")
                k("v_fma_f32 v29, -v28, v28, v29")
                k("v_max_f32 v29, 0, v29")
                k(f"v_add_f32 v29, {f32bits(1e-5):#x}, v29")
                k("v_sqrt_f32 v29, v29")
                k("s_nop 0")
                k("v_rcp_f32 v30, v29")
                k("v_cvt_pk_bf16_f32 v31, v28, v29")
                k("v_lshlrev_b32 v32, 16, v31")
                k("v_and_b32 v33, 0xffff0000, v31")
                k("v_sub_f32 v32, v28, v32")
                k("v_sub_f32 v33, v29, v33")
                k("v_cvt_pk_bf16_f32 v36, v28, v28")
                k("v_cvt_pk_bf16_f32 v37, v32, v29")
                k("v_cvt_pk_bf16_f32 v38, v29, v33")
                k("v_mov_b32 v39, 0")
                k("ds_write_b128 v34, v[36:39]")
                k("s_waitcnt lgkmcnt(0)")
                k("s_barrier")
                k("s_cmp_lg_u32 s19, 0")
                k(f"s_cbranch_scc1 {k.lab('end')}")
                k("v_lshlrev_b32 v35, 2, v0")
                k("s_lshl_b32 s40, s42, 8")
                k(f"s_add_u32 s40, s40, {RS}")
                k("buffer_store_dword v30, v35, s[8:11], s40 offen" + SC1)
            else:
                for i in range(4): k(f"v_mov_b32 v{36+i}, 0")
                for u in range(1, 4):
                    k(f"ds_write_b128 v34, v[36:39] offset:{u*512}")
                k("s_waitcnt lgkmcnt(0)")
                k("s_barrier")
        k("s_endpgm")
    k.label("compute")
    NACC = 4*NTL*4
    ACC = 256 - NACC
    FS = 16 + 4*NTL
    FB = [ACC - 2*FS, ACC - FS]
    assert FB[0] >= 56, FB
    assert kind in ('qkv', 'ffn1') or FB[0] >= 112
    def acc(mi, nj): return ACC + 4*(mi*NTL + nj)
    k("s_bfe_u32 s20, s3, 0x10001")
    k("s_and_b32 s21, s3, 1")
    k("v_lshrrev_b32 v3, 4, v0")
    k("v_and_b32 v4, 15, v0")
    k("v_lshlrev_b32 v5, 9, v3")
    k("v_lshl_add_u32 v5, v4, 4, v5")
    k(f"s_mul_i32 s22, s20, {2*PAN}")
    if kind == "ffn2":
        k(f"s_mul_i32 s23, s17, {PAN}")
        k("s_add_u32 s24, s22, s23")
        k("v_add_u32 v6, s24, v5")
        k(f"s_xor_b32 s24, s24, {PAN}")
        k("v_add_u32 v7, s24, v5")
    else:
        k("v_add_u32 v6, s22, v5")
    if kind == "qkv":
        k("v_bfe_u32 v10, v0, 2, 2")
        k("v_lshlrev_b32 v11, 10, v3")
        k("v_lshl_add_u32 v11, v10, 7, v11")
        k("v_and_b32 v12, 3, v0")
        k("v_lshl_add_u32 v11, v12, 3, v11")
        k("v_lshrrev_b32 v10, 1, v10")
        k("v_and_b32 v12, 1, v3")
        k("v_lshl_or_b32 v10, v12, 1, v10")
        k("s_lshl_b32 s23, s21, 1")
        k("v_xor_b32 v10, s23, v10")
        k("v_lshl_add_u32 v8, v10, 5, v11")
        k("v_xor_b32 v9, 32, v8")
    elif kind == "ffn1":
        k(f"s_mul_i32 s23, s21, {4*PAN}")
        k("v_add_u32 v8, s23, v5")
        k("s_lshl_b32 s23, s21, 8")
        k("v_add_u32 v9, s23, v5")
    else:
        k(f"s_mul_i32 s23, s21, {NTL//2*PAN}")
        k("v_add_u32 v8, s23, v5")
    two_x = kind == "ffn2"
    two_w = kind in ("qkv", "ffn1")
    for i in range(FS): k(f"v_mov_b32 v{FB[1]+i}, 0")
    for i in range(NACC): k(f"v_mov_b32 v{ACC+i}, 0")
    k("s_waitcnt lgkmcnt(0)")
    k.srd(8, 6, WS_BYTES)
    if cfg["ptr"] is not None and kind != "qkv": k.srd(12, 4, cfg["aux"])
    k("s_lshl_b32 s26, s18, 2")
    k("s_lshl_b32 s27, s20, 1")
    k("s_add_u32 s26, s26, s27")
    if kind in ("wo", "ffn2"):
        k("v_lshlrev_b32 v18, 11, v4")
        k("v_lshl_add_u32 v18, v3, 4, v18")
        k("v_lshlrev_b32 v19, 5, v3")
    k("s_mov_b32 s23, 0")
    k("s_mov_b32 s24, 0")
    def reads(sub, b):
        xr = []; wr = []
        for mi in range(4):
            if two_x: ad, off = ("v14" if mi < 2 else "v15"), (mi & 1)*256
            else:     ad, off = "v14", (mi >> 1)*PAN + (mi & 1)*256
            xr.append(f"ds_read_b128 {v(FB[b]+4*mi,4)}, {ad} offset:{off+sub*2048}")
        for nj in range(NTL):
            d = FB[b]+16+4*nj
            if kind == "qkv":
                ad = "v16" if nj % 2 == 0 else "v17"
                for rd in range(2):
                    wr.append(f"ds_read_b64_tr_b16 {v(d+2*rd,2)}, {ad} offset:{WOFF+(nj//2)*2*PAN+sub*4096+rd*512}")
            elif kind == "ffn1" and nj == 6:
                wr.append(f"ds_read_b128 {v(d,4)}, v17 offset:{WOFF+3*PAN+sub*2048}")
            else:
                wr.append(f"ds_read_b128 {v(d,4)}, v16 offset:{WOFF+(nj//2)*PAN+(nj%2)*256+sub*2048}")
        return xr + wr
    def mfmas(b):
        m = []
        for nj in range(NTL):
            for mi in range(4):
                c = v(acc(mi, nj), 4); xa = v(FB[b]+4*mi, 4); wa = v(FB[b]+16+4*nj, 4)
                if kind == "qkv" and nj >= 4: m.append(f"{MF16} {c}, {xa}, {wa}, {c}")
                else:                         m.append(f"{MF16} {c}, {wa}, {xa}, {c}")
        return m
    def group(r, mb_):
        m = mfmas(mb_)
        per = 2 if len(r) > len(m) - 2 else 1
        for i in range(len(m)):
            k(m[i])
            for _ in range(per):
                if r: k(r.pop(0))
        for x in r: k(x)
    def setaddr():
        r = ["v_add_u32 v14, s23, v6"]
        if two_x: r.append("v_add_u32 v15, s23, v7")
        r.append("v_add_u32 v16, s23, v8")
        if two_w: r.append("v_add_u32 v17, s23, v9")
        return r
    adv = [f"s_add_u32 s23, s23, {STG}", f"s_cmp_eq_u32 s23, {NS*STG}", "s_cselect_b32 s23, 0, s23"]
    for x in setaddr(): k(x)
    k.stamp(0)
    NIT = cfg["K32"] // 2
    k.label("cloop")
    k("s_barrier")
    k.L.append(";STAMPFIRST")
    if SUBS == 2:
        group(reads(0, 0) + adv, 1)
        k("s_waitcnt lgkmcnt(0)")
        group(reads(1, 1) + setaddr(), 0)
    else:
        group(reads(0, 0) + adv + setaddr(), 1)
        k("s_waitcnt lgkmcnt(0)")
        k("s_barrier")
        group(reads(0, 1) + adv + setaddr(), 0)
    k("s_add_u32 s24, s24, 1")
    if kind in ("wo", "ffn2"):
        k(f"s_cmp_lg_u32 s24, {NIT-4}")
        k(f"s_cbranch_scc1 {k.lab('nopre')}")
        if kind == "wo":
            k("s_lshl_b32 s28, s19, 1")
            k("s_add_u32 s28, s28, s21")
            k("s_lshl_b32 s29, s26, 16")
            k("s_lshl_b32 s30, s28, 6")
            k("s_add_u32 s30, s30, s29")
            k(f"s_mul_i32 s29, s26, {AU*512}")
            for mi in range(4):
                k(f"buffer_load_dwordx4 {v(20+4*mi,4)}, v18, s[12:15], s30 offen")
                if mi < 3: k("s_add_u32 s30, s30, 32768")
            k("s_lshl_b32 s31, s28, 7")
            k(f"s_add_u32 s32, s31, {MODF+2048*4}")
            k(f"s_add_u32 s33, s31, {MODF+4096*4}")
            for q in range(2):
                k(f"buffer_load_dwordx4 {v(36+4*q,4)}, v19, s[8:11], s32 offen offset:{16*q}")
                k(f"buffer_load_dwordx4 {v(44+4*q,4)}, v19, s[8:11], s33 offen offset:{16*q}")
        else:
            k("s_lshl_b32 s28, s19, 2")
            k("s_lshl_b32 s29, s21, 1")
            k("s_add_u32 s28, s28, s29")
            k("s_add_u32 s27, s26, s17")
            k("s_lshl_b32 s29, s27, 16")
            k("s_lshl_b32 s30, s28, 6")
            k("s_add_u32 s30, s30, s29")
            k(f"s_mul_i32 s29, s27, {AU*512}")
            k("s_lshl_b32 s31, s28, 11")
            k("s_add_u32 s31, s31, s29")
            k(f"s_add_u32 s31, s31, {X1}")
            for mi in range(2):
                for b in range(2):
                    k(f"buffer_load_dwordx4 {v(20+8*mi+4*b,4)}, v5, s[8:11], s31 offen offset:{b*2048+mi*256}")
            k("s_lshl_b32 s31, s28, 7")
            k(f"s_add_u32 s32, s31, {MODF+5120*4}")
            for b in range(2):
                for q in range(2):
                    k(f"buffer_load_dwordx4 {v(36+8*b+4*q,4)}, v19, s[8:11], s32 offen offset:{128*b+16*q}")
            k("v_lshlrev_b32 v54, 2, v4")
            k("s_lshl_b32 s33, s27, 7")
            k(f"s_add_u32 s33, s33, {RS}")
            k("buffer_load_dword v52, v54, s[8:11], s33 offen")
            k("buffer_load_dword v53, v54, s[8:11], s33 offen offset:64")
        k.label("nopre")
    k(f"s_cmp_lt_u32 s24, {NIT}")
    k("s_waitcnt lgkmcnt(0)")
    k(f"s_cbranch_scc1 {k.lab('cloop')}")
    if kind == "ffn1":
        k("s_lshl_b32 s22, s20, 12")
        k(f"s_add_u32 s22, s22, {XX}")
        k("v_add_u32 v14, s22, v5")
        k("v_lshlrev_b32 v16, 4, v4")
        k("s_lshl_b32 s22, s21, 8")
        k(f"s_add_u32 s22, s22, {XW+3*512}")
        k("v_add_u32 v17, s22, v16")
        k("s_lshl_b32 s22, s21, 11")
        k(f"s_add_u32 s22, s22, {XW}")
        k("v_add_u32 v16, s22, v16")
        k("s_barrier")
        r = [f"ds_read_b128 {v(FB[0]+4*mi,4)}, v14 offset:{(mi>>1)*2048+(mi&1)*256}" for mi in range(4)]
        r += [f"ds_read_b128 {v(FB[0]+16+4*nj,4)}, v16 offset:{(nj//2)*512+(nj%2)*256}" for nj in range(6)]
        r += [f"ds_read_b128 {v(FB[0]+16+24,4)}, v17"]
        group(r, 1)
        k("s_waitcnt lgkmcnt(0)")
        group([], 0)
    else:
        group([], 1)
    k.stamp(2)
    def pack(dst, a0, a1):
        k(f"v_cvt_pk_bf16_f32 v{dst}, v{a0}, v{a0+1}")
        k(f"v_cvt_pk_bf16_f32 v{dst+1}, v{a0+2}, v{a0+3}")
        k(f"v_cvt_pk_bf16_f32 v{dst+2}, v{a1}, v{a1+1}")
        k(f"v_cvt_pk_bf16_f32 v{dst+3}, v{a1+2}, v{a1+3}")
    if kind == "qkv":
        k("s_lshl_b32 s25, s19, 1")
        k("s_add_u32 s25, s25, s21")
        k("s_lshl_b32 s25, s25, 6")
        k("s_add_u32 s25, s25, s26")
        k("s_lshl_b32 s28, s25, 11")
        k(f"s_add_u32 s28, s28, {QB}")
        k("s_lshl_b32 s29, s25, 12")
        k(f"s_add_u32 s29, s29, {KVB}")
        k("s_add_u32 s30, s29, 4096")
        k(f"s_mov_b32 s31, {f32bits(32**-0.5*LOG2E):#x}")
        k("v_and_b32 v18, 8, v4")
        k("v_lshl_add_u32 v18, v18, 4, v5")
        k("v_and_b32 v19, 3, v4")
        k("v_and_b32 v20, 4, v4")
        k("v_lshl_or_b32 v19, v20, 1, v19")
        k("v_and_b32 v20, 8, v4")
        k("v_lshrrev_b32 v20, 1, v20")
        k("v_or_b32 v19, v19, v20")
        k("v_lshlrev_b32 v19, 4, v19")
        k("v_lshl_add_u32 v19, v3, 9, v19")
        for mi in range(4):
            for r in range(8):
                k(f"v_mul_f32 v{acc(mi,0)+r}, s31, v{acc(mi,0)+r}")
            pack(acc(mi, 0), acc(mi, 0), acc(mi, 1))
            k(f"buffer_store_dwordx4 {v(acc(mi,0),4)}, v5, s[8:11], s28 offen offset:{(mi>>1)*2048+(mi&1)*256}" + SC1)
        for mi in range(4):
            pack(acc(mi, 2), acc(mi, 2), acc(mi, 3))
            k(f"buffer_store_dwordx4 {v(acc(mi,2),4)}, v18, s[8:11], {'s29' if mi<2 else 's30'} offen offset:{(mi&1)*128}" + SC1)
        for b in range(2):
            for t in range(2):
                pack(acc(2*b, 4+t), acc(2*b, 4+t), acc(2*b+1, 4+t))
                k(f"buffer_store_dwordx4 {v(acc(2*b,4+t),4)}, v19, s[8:11], {'s29' if b==0 else 's30'} offen offset:{2048+t*256}" + SC1)
    elif kind == "ffn1":
        k(f"s_mul_i32 s28, s26, {HU*512}")
        k(f"s_mul_i32 s29, s19, {7*2048}")
        k("s_add_u32 s28, s28, s29")
        k(f"s_add_u32 s28, s28, {HF}")
        k("s_lshl_b32 s29, s21, 10")
        k("s_add_u32 s30, s28, s29")
        k(f"s_add_u32 s30, s30, {3*2048}")
        k("s_lshl_b32 s29, s21, 13")
        k("s_add_u32 s28, s28, s29")
        k(f"s_add_u32 s29, s28, {HU*512}")
        k(f"s_add_u32 s31, s30, {HU*512}")
        for b in range(3):
            for mi in range(4):
                A = acc(mi, 2*b)
                pack(A, A, acc(mi, 2*b+1))
                for r in range(4): k(f"v_pk_max_i16 v{A+r}, v{A+r}, 0")
                k(f"buffer_store_dwordx4 {v(A,4)}, v5, s[8:11], {'s28' if mi<2 else 's29'} offen offset:{(b%2)*2048+(mi&1)*256}" + SC1)
            if b == 1:
                k("s_add_u32 s28, s28, 4096")
                k("s_add_u32 s29, s29, 4096")
        for b in range(2):
            A = acc(2*b, 6)
            pack(A, A, acc(2*b+1, 6))
            for r in range(4): k(f"v_pk_max_i16 v{A+r}, v{A+r}, 0")
            k.nop(2)
            k(f"v_permlane16_swap_b32 v{A}, v{A+2}")
            k(f"v_permlane16_swap_b32 v{A+1}, v{A+3}")
            k(f"buffer_store_dwordx4 {v(A,4)}, v2, s[8:11], {'s30' if b==0 else 's31'} offen" + SC1)
    elif kind == "wo":
        T = 64
        k("s_lshl_b32 s31, s28, 11")
        k("s_add_u32 s31, s31, s29")
        k(f"s_add_u32 s32, s31, {X1}")
        k(f"s_add_u32 s33, s31, {YB}")
        k(f"s_add_u32 s34, s32, {AU*512}")
        k(f"s_add_u32 s35, s33, {AU*512}")
        k("s_waitcnt vmcnt(0)")
        for mi in range(4):
            A = acc(mi, 0); X = T+8*mi
            for d in range(4):
                k(f"v_lshlrev_b32 v{X+2*d}, 16, v{20+4*mi+d}")
                k(f"v_and_b32 v{X+2*d+1}, 0xffff0000, v{20+4*mi+d}")
            for r in range(8): k(f"v_fmac_f32 v{X+r}, v{A+r}, v{36+r}")
            for r in range(8): k(f"v_mul_f32 v{A+r}, v{X+r}, v{44+r}")
            pack(A, A, A+4)
            pack(A+4, X, X+4)
            k(f"buffer_store_dwordx4 {v(A,4)}, v5, s[8:11], {'s33' if mi<2 else 's35'} offen offset:{(mi&1)*256}" + SC1)
            k(f"buffer_store_dwordx4 {v(A+4,4)}, v5, s[8:11], {'s32' if mi<2 else 's34'} offen offset:{(mi&1)*256}" + SC1)
        S = 96
        for mi in range(4):
            X = T+8*mi
            k(f"v_add_f32 v{S+mi}, v{X}, v{X+1}")
            k(f"v_mul_f32 v{S+4+mi}, v{X}, v{X}")
        for r in range(1, 8):
            for mi in range(4):
                X = T+8*mi
                if r > 1: k(f"v_add_f32 v{S+mi}, v{S+mi}, v{X+r}")
                k(f"v_fmac_f32 v{S+4+mi}, v{X+r}, v{X+r}")
        k.nop(2)
        for o in (0, 4):
            k(f"v_permlane32_swap_b32 v{S+o}, v{S+o+2}")
            k(f"v_permlane32_swap_b32 v{S+o+1}, v{S+o+3}")
        for o in (0, 4):
            k(f"v_add_f32 v{S+o}, v{S+o}, v{S+o+2}")
            k(f"v_add_f32 v{S+o+1}, v{S+o+1}, v{S+o+3}")
        k.nop(2)
        for o in (0, 4):
            k(f"v_permlane16_swap_b32 v{S+o}, v{S+o+1}")
        k(f"v_add_f32 v{S+8}, v{S}, v{S+1}")
        k(f"v_add_f32 v{S+9}, v{S+4}, v{S+5}")
        k("s_lshl_b32 s31, s26, 4")
        k("s_add_u32 s31, s31, s28")
        k("s_lshl_b32 s31, s31, 9")
        k(f"s_add_u32 s31, s31, {ST}")
        k("v_lshlrev_b32 v18, 3, v0")
        k(f"buffer_store_dwordx2 {v(S+8,2)}, v18, s[8:11], s31 offen" + SC1)
    else:
        k("s_and_b32 s34, s3, 3")
        k("s_lshl_b32 s35, s2, 2")
        k("s_add_u32 s35, s35, s34")
        k("s_lshl_b32 s36, s35, 13")
        k(f"s_add_u32 s36, s36, {XCH}")
        k("s_add_u32 s37, s36, 4096")
        k("s_xor_b32 s38, s36, 0x8000")
        k("s_add_u32 s39, s38, 4096")
        k("s_lshl_b32 s40, s2, 7")
        k("s_lshl_b32 s41, s34, 2")
        k("s_add_u32 s40, s40, s41")
        k(f"s_add_u32 s40, s40, {FLG}")
        k("s_xor_b32 s41, s40, 128")
        k("v_mov_b32 v55, 0")
        k("v_mov_b32 v56, 1")
        for q in range(8):
            k(f"buffer_store_dwordx4 {v(acc(2,0)+4*q,4)}, v2, s[8:11], {'s36' if q<4 else 's37'} offen offset:{(q%4)*1024} sc0 sc1")
        k("s_waitcnt vmcnt(0)")
        k("buffer_store_dword v56, v55, s[8:11], s40 offen sc0 sc1")
        T = 64
        for u in range(4):
            for d in range(4):
                k(f"v_lshlrev_b32 v{T+8*u+2*d}, 16, v{20+4*u+d}")
                k(f"v_and_b32 v{T+8*u+2*d+1}, 0xffff0000, v{20+4*u+d}")
        k("s_mov_b32 s43, 0")
        k.label("poll")
        k("buffer_load_dword v57, v55, s[8:11], s41 offen sc0 sc1")
        k("s_add_u32 s43, s43, 1")
        k("s_cmp_gt_u32 s43, 0x100000")
        k(f"s_cbranch_scc1 {k.lab('pollx')}")
        k("s_waitcnt vmcnt(0)")
        k("v_readfirstlane_b32 s42, v57")
        k.nop(1)
        k("s_cmp_eq_u32 s42, 1")
        k(f"s_cbranch_scc0 {k.lab('poll')}")
        k.label("pollx")
        for q in range(8):
            k(f"buffer_load_dwordx4 {v(acc(2,0)+4*q,4)}, v2, s[8:11], {'s38' if q<4 else 's39'} offen offset:{(q%4)*1024} sc0 sc1")
        k("s_add_u32 s31, s30, 32768")
        for mi in range(2):
            for b in range(2):
                u = 2*mi+b
                A = acc(mi, 2*b); Bq = acc(2+mi, 2*b); X = T+8*u
                k(f"s_waitcnt vmcnt({6-2*u+u})")
                for r in range(8): k(f"v_add_f32 v{A+r}, v{A+r}, v{Bq+r}")
                for r in range(8): k(f"v_mul_f32 v{A+r}, v{A+r}, v{52+mi}")
                for r in range(8): k(f"v_fmac_f32 v{X+r}, v{A+r}, v{36+8*b+r}")
                pack(A, X, X+4)
                k(f"buffer_store_dwordx4 {v(A,4)}, v18, s[12:15], {'s30' if mi==0 else 's31'} offen offset:{b*64}")
    k.stamp(3)
    end(k)
    return k
```

```python
from common import *

MOFF = 48.0
LTHR = 2.0**110

def k_attn():
    STGB = 65536; GS = 98304; FLAG = 102400
    k = Kern("attn_kernel", 256, 640, FLAG + 64, vgpr=128)
    prologue(k, 256, [(4, 16), (6, 80)])
    k("s_load_dwordx4 s[36:39], s[0:1], 32")
    k("s_and_b32 s16, s2, 7")
    k("s_lshr_b32 s17, s2, 3")
    k("s_lshl_b32 s18, s16, 2")
    k("s_lshr_b32 s19, s17, 3")
    k("s_add_u32 s18, s18, s19")
    k("s_and_b32 s19, s17, 7")
    k("v_lshlrev_b32 v2, 4, v0")
    k("s_waitcnt lgkmcnt(0)")
    k.srd(8, 6, WS_BYTES)
    k("s_cmp_eq_u32 s3, 8")
    k(f"s_cbranch_scc1 {k.lab('loader')}")
    k("s_cmp_eq_u32 s3, 9")
    k(f"s_cbranch_scc1 {k.lab('prep')}")
    Q0, Q1, K0, K1, V0, V1, P0, P1, SEL, LL, O, NEGM, SA, SB = 4, 8, 12, 16, 20, 24, 28, 32, 36, 40, 48, 64, 80, 96
    k("s_lshl_b32 s20, s19, 3")
    k("s_add_u32 s20, s20, s3")
    k("s_lshl_b32 s21, s18, 6")
    k("s_add_u32 s21, s21, s20")
    k("s_lshl_b32 s21, s21, 11")
    k(f"s_add_u32 s21, s21, {QB}")
    k(f"buffer_load_dwordx4 {v(Q0,4)}, v2, s[8:11], s21 offen")
    k(f"buffer_load_dwordx4 {v(Q1,4)}, v2, s[8:11], s21 offen offset:1024")
    k(f"s_mul_i32 s22, s20, {AU*512}")
    k("s_lshl_b32 s23, s18, 11")
    k("s_add_u32 s22, s22, s23")
    k(f"s_add_u32 s22, s22, {AO}")
    k("v_lshrrev_b32 v1, 2, v0")
    k("v_lshrrev_b32 v3, 4, v0")
    k("v_xor_b32 v1, v1, v3")
    k("v_and_b32 v1, 1, v1")
    k("v_cmp_eq_u32 vcc, 0, v1")
    k("v_mov_b32 v3, 0x3f803f80")
    k.nop(1)
    for i in range(4):
        k(f"v_cndmask_b32 v{SEL+i}, 0, v3, vcc")
    k("s_mov_b32 s24, 0")
    k.label("main")
    for i in range(16): k(f"v_mov_b32 v{O+i}, 0")
    for i in range(4):
        k(f"v_mov_b32 v{LL+i}, 0")
        k(f"v_mov_b32 v{P1+i}, 0")
        k(f"v_mov_b32 v{V1+i}, 0")
    k("s_waitcnt vmcnt(0)")
    k.stamp(0)
    k("s_barrier")
    k.stamp(1)
    k(f"ds_read_b128 {v(K0,4)}, v2")
    k(f"ds_read_b128 {v(K1,4)}, v2 offset:1024")
    k(f"ds_read_b128 {v(V0,4)}, v2 offset:2048")
    k("s_cmp_lg_u32 s24, 0")
    k("s_waitcnt lgkmcnt(0)")
    k(f"s_cbranch_scc1 {k.lab('havem')}")
    k(f"{MF32} {v(SA,16)}, {v(K0,4)}, {v(Q0,4)}, 0")
    k(f"{MF32} {v(SA,16)}, {v(K1,4)}, {v(Q1,4)}, {v(SA,16)}")
    k.nop(12)
    k(f"v_max3_f32 v112, v{SA}, v{SA+1}, v{SA+2}")
    for i in range(3, 15, 2):
        k(f"v_max3_f32 v112, v112, v{SA+i}, v{SA+i+1}")
    k(f"v_max_f32 v112, v112, v{SA+15}")
    k("v_mov_b32 v113, v112")
    k.nop(2)
    k("v_permlane32_swap_b32 v113, v112")
    k("v_max_f32 v112, v112, v113")
    k(f"v_sub_f32 v112, {f32bits(-MOFF):#x}, v112")
    for i in range(16): k(f"v_mov_b32 v{NEGM+i}, v112")
    k.nop(2)
    k.label("havem")
    k(f"{MF32} {v(SA,16)}, {v(K0,4)}, {v(Q0,4)}, {v(NEGM,16)}")
    k(f"{MF32} {v(SA,16)}, {v(K1,4)}, {v(Q1,4)}, {v(SA,16)}")
    k(f"ds_read_b128 {v(K0,4)}, v2 offset:4096")
    k(f"ds_read_b128 {v(K1,4)}, v2 offset:{4096+1024}")
    k("s_mov_b32 s25, 0")
    k("s_waitcnt lgkmcnt(0)")
    k.nop(8)
    k.stamp(2)
    k(f"s_branch {k.lab('in')}")
    k.label("loop")
    for i in range(16):
        if i % 4 == 0:
            k("s_waitcnt lgkmcnt(2)")
            k("s_barrier")
            if i == 0: k.label("in")
        C = SA if i % 2 == 0 else SB
        N = SB if i % 2 == 0 else SA
        def ex(a_):
            for r in range(a_, a_+4): k(f"v_exp_f32 v{C+r}, v{C+r}")
        k("s_waitcnt lgkmcnt(3)")
        k(f"{MF32} {v(N,16)}, {v(K0,4)}, {v(Q0,4)}, {v(NEGM,16)}")
        k(f"ds_read_b128 {v(K0,4)}, v2 offset:{((i+2)%16)*4096}")
        ex(0)
        k("s_waitcnt lgkmcnt(3)")
        k(f"{MF32} {v(O,16)}, {v(V1,4)}, {v(P1,4)}, {v(O,16)}")
        k(f"ds_read_b128 {v(V1,4)}, v2 offset:{i*4096+3072}")
        ex(4)
        k("s_waitcnt lgkmcnt(3)")
        k(f"{MF32} {v(N,16)}, {v(K1,4)}, {v(Q1,4)}, {v(N,16)}")
        k(f"ds_read_b128 {v(K1,4)}, v2 offset:{((i+2)%16)*4096+1024}")
        for r in range(4): k(f"v_cvt_pk_bf16_f32 v{P0+r}, v{C+2*r}, v{C+2*r+1}")
        k(f"{MF16} {v(LL,4)}, {v(SEL,4)}, {v(P1,4)}, {v(LL,4)}")
        ex(8)
        k("s_waitcnt lgkmcnt(3)")
        k(f"{MF32} {v(O,16)}, {v(V0,4)}, {v(P0,4)}, {v(O,16)}")
        k(f"ds_read_b128 {v(V0,4)}, v2 offset:{((i+1)%16)*4096+2048}")
        ex(12)
        k(f"{MF16} {v(LL,4)}, {v(SEL,4)}, {v(P0,4)}, {v(LL,4)}")
        for r in range(4): k(f"v_cvt_pk_bf16_f32 v{P1+r}, v{C+8+2*r}, v{C+8+2*r+1}")
    k("s_add_u32 s25, s25, 1")
    k("s_cmp_lt_u32 s25, 4")
    k(f"s_cbranch_scc1 {k.lab('loop')}")
    k("s_waitcnt lgkmcnt(0)")
    k.stamp(3)
    k(f"{MF32} {v(O,16)}, {v(V1,4)}, {v(P1,4)}, {v(O,16)}")
    k(f"{MF16} {v(LL,4)}, {v(SEL,4)}, {v(P1,4)}, {v(LL,4)}")
    k.nop(12)
    k(f"v_rcp_f32 v112, v{LL}")
    k("v_mov_b32 v113, 0")
    for r in range(16): k(f"v_mul_f32 v{O+r}, v{O+r}, v112")
    for r in range(8): k(f"v_cvt_pk_bf16_f32 v{116+r}, v{O+2*r}, v{O+2*r+1}")
    k(f"buffer_store_dwordx4 v[116:119], v2, s[8:11], s22 offen" + SC1)
    k(f"buffer_store_dwordx4 v[120:123], v2, s[8:11], s22 offen offset:1024" + SC1)
    k("s_cmp_lg_u32 s24, 0")
    k(f"s_cbranch_scc1 {k.lab('end')}")
    for r in range(16): k(f"v_fmac_f32 v113, 0, v{O+r}")
    k(f"s_mov_b32 s26, {f32bits(LTHR):#x}")
    k(f"v_cmp_ngt_f32 s[28:29], s26, v{LL}")
    k("v_cmp_u_f32 vcc, v113, v113")
    k.nop(1)
    k("s_or_b64 s[28:29], s[28:29], vcc")
    k(f"v_mov_b32 v114, {FLAG}")
    k(f"s_cbranch_scc0 {k.lab('nofail')}")
    k("v_mov_b32 v115, 1")
    k("ds_write_b32 v114, v115")
    k("s_waitcnt lgkmcnt(0)")
    k.label("nofail")
    k("s_barrier")
    k("ds_read_b32 v115, v114")
    k("s_waitcnt lgkmcnt(0)")
    k("v_readfirstlane_b32 s26, v115")
    k.nop(1)
    k("s_cmp_eq_u32 s26, 0")
    k(f"s_cbranch_scc1 {k.lab('end')}")
    k(f"v_mov_b32 v112, {f32bits(-3.0e38):#x}")
    k("s_mov_b32 s25, 0")
    k.label("mloop")
    k("s_and_b32 s26, s25, 3")
    k("s_cmp_lg_u32 s26, 0")
    k(f"s_cbranch_scc1 {k.lab('mnobar')}")
    k("s_barrier")
    k.label("mnobar")
    k("s_and_b32 s26, s25, 15")
    k("s_lshl_b32 s26, s26, 12")
    k("v_add_u32 v3, s26, v2")
    k(f"ds_read_b128 {v(K0,4)}, v3")
    k(f"ds_read_b128 {v(K1,4)}, v3 offset:1024")
    k("s_waitcnt lgkmcnt(0)")
    k(f"{MF32} {v(SA,16)}, {v(K0,4)}, {v(Q0,4)}, 0")
    k(f"{MF32} {v(SA,16)}, {v(K1,4)}, {v(Q1,4)}, {v(SA,16)}")
    k.nop(12)
    for i in range(0, 16, 2):
        k(f"v_max3_f32 v112, v112, v{SA+i}, v{SA+i+1}")
    k("s_add_u32 s25, s25, 1")
    k("s_cmp_lt_u32 s25, 64")
    k(f"s_cbranch_scc1 {k.lab('mloop')}")
    k("v_mov_b32 v113, v112")
    k.nop(2)
    k("v_permlane32_swap_b32 v113, v112")
    k("v_max_f32 v112, v112, v113")
    k("v_sub_f32 v112, 0, v112")
    for i in range(16): k(f"v_mov_b32 v{NEGM+i}, v112")
    k("s_mov_b32 s24, 1")
    k("s_barrier")
    k(f"s_branch {k.lab('main')}")
    k.label("loader")
    k(f"v_mov_b32 v4, {FLAG}")
    k("v_mov_b32 v5, 0")
    k("ds_write_b32 v4, v5")
    k("s_mov_b32 s24, 0")
    k.label("lpass")
    k("s_lshl_b32 s20, s18, 18")
    k(f"s_add_u32 s20, s20, {KVB}")
    k("s_mov_b32 s21, 0")
    k("s_mov_b32 s25, 0")
    k.label("lloop")
    for g in range(4):
        k("s_mov_b32 m0, s21")
        k("s_add_u32 s21, s21, 4096")
        for j in range(4):
            k(f"buffer_load_dwordx4 v2, s[8:11], s20 offen offset:{j*1024} lds")
        k("s_add_u32 s20, s20, 4096")
    k("s_and_b32 s21, s21, 0xffff")
    k("s_add_u32 s25, s25, 1")
    k("s_cmp_lt_u32 s25, 3")
    k(f"s_cbranch_scc1 {k.lab('lloop')}")
    k("s_waitcnt vmcnt(16) lgkmcnt(0)")
    k("s_barrier")
    k("s_cmp_lt_u32 s25, 16")
    k(f"s_cbranch_scc1 {k.lab('lloop')}")
    k("s_waitcnt vmcnt(0)")
    k("s_barrier")
    k("s_barrier")
    k("s_cmp_eq_u32 s24, 2")
    k(f"s_cbranch_scc1 {k.lab('end')}")
    k("s_barrier")
    k("s_add_u32 s24, s24, 1")
    k("ds_read_b32 v5, v4")
    k("s_waitcnt lgkmcnt(0)")
    k("v_readfirstlane_b32 s26, v5")
    k.nop(1)
    k("s_cmp_lg_u32 s26, 0")
    k(f"s_cbranch_scc1 {k.lab('lpass')}")
    k("s_endpgm")
    k.label("prep")
    k("s_cmp_lt_u32 s2, 112")
    k(f"s_cbranch_scc0 {k.lab('pw2')}")
    k("s_and_b32 s30, s2, 0xf0")
    k("s_and_b32 s31, s2, 7")
    k("s_lshl_b32 s31, s31, 1")
    k("s_add_u32 s30, s30, s31")
    k("s_bfe_u32 s31, s2, 0x10003")
    k("s_add_u32 s30, s30, s31")
    k("s_lshl_b32 s40, s30, 6")
    k(f"s_mov_b32 s41, {128*7168}")
    k(f"s_mov_b32 s42, {256*7168}")
    k(f"s_mul_i32 s43, s30, {W1U*512}")
    k(f"s_add_u32 s43, s43, {W1P}")
    k("s_mov_b32 s44, 8192")
    k("s_mov_b32 s45, 16384")
    k("s_movk_i32 s46, 7168")
    k.srd(12, 36, 1024*3584*2)
    k("s_mul_i32 s31, s30, 9363")
    k("s_lshr_b32 s31, s31, 16")
    k("s_mul_i32 s31, s31, 7")
    k("s_sub_u32 s31, s30, s31")
    k("s_cmp_eq_u32 s31, 3")
    k("s_cselect_b32 s48, 3, 4")
    k("s_cselect_b32 s49, 5, 3")
    k(f"s_branch {k.lab('pgo')}")
    k.label("pw2")
    k("s_mov_b32 s48, 4")
    k("s_mov_b32 s49, 3")
    k("s_movk_i32 s30, 224")
    k(f"s_mov_b32 s44, {AU*512}")
    k(f"s_mov_b32 s43, {WOP}")
    k(f"s_mov_b32 s14, {1024*1024*2}")
    k("s_cmp_lt_u32 s2, 224")
    k("s_cselect_b32 s30, 112, s30")
    k(f"s_cselect_b32 s44, {HU*512}, s44")
    k(f"s_cselect_b32 s43, {W2P}, s43")
    k("s_cselect_b32 s12, s38, s4")
    k("s_cselect_b32 s13, s39, s5")
    k(f"s_cselect_b32 s14, {3584*1024*2}, s14")
    k("s_and_b32 s13, s13, 0xffff")
    k("s_mov_b32 s15, 0x20000")
    k("s_sub_u32 s30, s2, s30")
    k("s_lshr_b32 s31, s30, 4")
    k("s_and_b32 s30, s30, 15")
    k("s_lshl_b32 s40, s31, 20")
    k("s_lshl_b32 s32, s30, 7")
    k("s_add_u32 s40, s40, s32")
    k("s_mov_b32 s41, 64")
    k(f"s_mov_b32 s42, {128*2048}")
    k("s_lshl_b32 s32, s30, 1")
    k("s_mul_i32 s32, s32, s44")
    k("s_add_u32 s43, s43, s32")
    k("s_lshl_b32 s32, s31, 15")
    k("s_add_u32 s43, s43, s32")
    k("s_mov_b32 s45, 8192")
    k("s_movk_i32 s46, 2048")
    k.label("pgo")
    k("v_lshrrev_b32 v3, 2, v0")
    k("v_and_b32 v4, 3, v0")
    k("v_lshlrev_b32 v4, 4, v4")
    k("v_mad_u32_u24 v3, v3, s46, v4")
    k("s_lshl_b32 s47, s46, 4")
    k("v_and_b32 v5, 3, v0")
    k("v_lshlrev_b32 v5, s48, v5")
    k("v_bfe_u32 v4, v0, 4, 1")
    k("v_lshl_add_u32 v5, v4, s49, v5")
    k("v_lshrrev_b32 v4, 5, v0")
    k("v_lshl_add_u32 v5, v4, 9, v5")
    k("v_bfe_u32 v6, v0, 2, 2")
    k("v_lshl_add_u32 v5, v6, 6, v5")
    k(f"v_add_u32 v5, {STGB}, v5")
    k("v_and_b32 v6, 1, v0")
    k("v_xor_b32 v6, 1, v6")
    k("v_lshlrev_b32 v6, 11, v6")
    k("v_lshl_add_u32 v6, v4, 4, v6")
    k(f"v_add_u32 v6, {GS}, v6")
    k(f"s_mov_b32 m0, {GS}")
    k(f"s_mov_b32 s33, {MODB+6144}")
    for j in range(4):
        k(f"buffer_load_dwordx4 v2, s[8:11], s33 offen offset:{j*1024} lds")
    for i in range(16): k(f"v_mov_b32 v{80+i}, 0")
    k("s_mov_b32 s25, 0")
    k.label("ploop")
    k("s_cmp_lt_u32 s25, 2")
    k(f"s_cbranch_scc1 {k.lab('pissue')}")
    k("s_sub_u32 s30, s25, 2")
    k("s_and_b32 s31, s30, 3")
    k("s_lshl_b32 s31, s31, 13")
    k("v_add_u32 v7, s31, v5")
    k("s_lshl_b32 s31, s30, 8")
    k("v_add_u32 v8, s31, v6")
    k("s_and_b32 s31, s30, 1")
    k("s_mul_i32 s31, s31, s44")
    k("s_lshr_b32 s32, s30, 1")
    k("s_mul_i32 s32, s32, s45")
    k("s_add_u32 s31, s31, s32")
    k("s_add_u32 s31, s31, s43")
    k("s_add_u32 s32, s31, 4096")
    k("s_waitcnt vmcnt(8)")
    for q in range(8):
        for rd in range(2):
            k(f"ds_read_b64_tr_b16 {v(16+4*q+2*rd,2)}, v7 offset:{q*1024+rd*256}")
    k("s_waitcnt lgkmcnt(0)")
    for q in range(8):
        k(f"ds_read_b128 {v(48+4*q,4)}, v8 offset:{q*32}")
    for q in range(8):
        k(f"buffer_store_dwordx4 {v(16+4*q,4)}, v2, s[8:11], {'s31' if q<4 else 's32'} offen offset:{(q%4)*1024}" + SC1)
    k("s_waitcnt lgkmcnt(0)")
    k("s_cmp_lt_u32 s2, 112")
    k(f"s_cbranch_scc0 {k.lab('pissue')}")
    for q in range(8):
        k(f"{MF32} {v(80,16)}, {v(48+4*q,4)}, {v(16+4*q,4)}, {v(80,16)}")
    k.label("pissue")
    k("s_cmp_lt_u32 s25, 8")
    k(f"s_cbranch_scc0 {k.lab('pnext')}")
    k("s_and_b32 s31, s25, 1")
    k("s_mul_i32 s31, s31, s41")
    k("s_lshr_b32 s32, s25, 1")
    k("s_mul_i32 s32, s32, s42")
    k("s_add_u32 s31, s31, s32")
    k("s_add_u32 s31, s31, s40")
    k("s_and_b32 s32, s25, 3")
    k("s_lshl_b32 s32, s32, 13")
    k(f"s_add_u32 s32, s32, {STGB}")
    for i in range(8):
        k("s_mov_b32 m0, s32")
        k("s_add_u32 s32, s32, 1024")
        k("buffer_load_dwordx4 v3, s[12:15], s31 offen lds")
        k("s_add_u32 s31, s31, s47")
    k.label("pnext")
    k("s_add_u32 s25, s25, 1")
    k("s_cmp_lt_u32 s25, 10")
    k(f"s_cbranch_scc0 {k.lab('pdone')}")
    k("s_barrier")
    k(f"s_branch {k.lab('ploop')}")
    k.label("pdone")
    k("s_cmp_lt_u32 s2, 112")
    k(f"s_cbranch_scc0 {k.lab('end')}")
    k.nop(12)
    k("v_cvt_pk_bf16_f32 v17, v80, v81")
    k("v_lshlrev_b32 v10, 16, v17")
    k("v_and_b32 v11, 0xffff0000, v17")
    k("v_sub_f32 v10, v80, v10")
    k("v_sub_f32 v11, v81, v11")
    k("v_cvt_pk_bf16_f32 v16, v80, v10")
    k("v_cvt_pk_bf16_f32 v18, v11, v81")
    k("v_mov_b32 v19, 0")
    k("v_cmp_gt_u32 vcc, 32, v0")
    k.nop(2)
    for i in range(3):
        k(f"v_cndmask_b32 v{16+i}, 0, v{16+i}, vcc")
    k(f"s_add_u32 s31, s43, {128*512}")
    k("buffer_store_dwordx4 v[16:19], v2, s[8:11], s31 offen" + SC1)
    end(k)
    return k
```

```python
import sys
from common import *
from front2 import *
from k_attn import *
from gemm3 import *


def build(kernels, path):
    hdr = open(f"cdna_kernels/{NAME}.s.ref").read().split("; Override launch")[0]
    out = hdr
    for k in kernels:
        out += k.launch_line() + "\n"
    out += '.amdgcn_target "amdgcn-amd-amdhsa--gfx950"\n'
    nerr = 0
    for k in kernels:
        nerr += len(check(k))
        out += k.text()
    open(path, "w").write(out)
    print("wrote", path, "hazard errors:", nerr, "instr counts:", {k.name: len(k.L) for k in kernels})

if __name__ == "__main__":
    ks = [k_mod(), k_ln1(), k_gemm("qkv"), k_attn(), k_gemm("wo"), k_gemm("ffn1"), k_gemm("ffn2")]
    import os
    sf = os.environ.get("STFLAG", "")
    if sf:
        for k in ks:
            k.L = [l + " " + sf if l.startswith("buffer_store") else l for l in k.L]
    if len(sys.argv) > 2 and sys.argv[2] == "inst":
        for i, k in enumerate(ks): k.instrument(i, DBGOFF)
    build(ks, sys.argv[1] if len(sys.argv) > 1 else f"cdna_kernels/{NAME}.s")
```
